```python
import torch

def _softmax(x, axis=-1):
    return torch.softmax(x, dim=axis)
def _gelu(x):
    return torch.nn.functional.gelu(x, approximate="tanh")
def _silu(x):
    return torch.nn.functional.silu(x)
def _sigmoid(x):
    return torch.sigmoid(x)
def _layernorm(x, axis=-1, eps=1e-5):
    m = x.mean(dim=axis, keepdim=True)
    v = x.var(dim=axis, keepdim=True, unbiased=False)
    return (x - m) / torch.sqrt(v + eps)
def _scatter_add(tgt, idx, src, axis=0):
    return tgt.clone().index_add_(axis, idx, src)
def _segment_sum(src, seg, n):
    out = torch.zeros((n,) + src.shape[1:], dtype=src.dtype)
    return out.index_add_(0, seg, src)
def _pad(x, pw):
    flat = tuple(v for pair in reversed(pw) for v in pair)
    return torch.nn.functional.pad(x, flat)

kernel_name = 'interleave_layers__linear_attn_block__geglu_ffn__prompt'

def setup_inputs():

    _w = (lambda a: (lambda t: t.to(torch.bfloat16) if t.is_floating_point() else t)(torch.as_tensor(a)))
    def _A_setup():
        B, S, D = 1, 2048, 576
        return {
            "x": _w((lambda *s: torch.randn(*s, dtype=torch.bfloat16) * 0.05)(B, S, D)),
            "wqkv": _w((lambda *s: torch.randn(*s, dtype=torch.bfloat16) * 0.05)(D, 3 * D)),
            "wo": _w((lambda *s: torch.randn(*s, dtype=torch.bfloat16) * 0.05)(D, D)),
        }
    _A_in = _A_setup()

    def _B_setup():
        B, S, D, F = 1, 2048, 576, 4608
        return {
            "x": _w((lambda *s: torch.randn(*s, dtype=torch.bfloat16) * 0.05)(B, S, D)),
            "w_gate": _w((lambda *s: torch.randn(*s, dtype=torch.bfloat16) * 0.05)(D, F)),
            "w_up": _w((lambda *s: torch.randn(*s, dtype=torch.bfloat16) * 0.05)(D, F)),
            "w_down": _w((lambda *s: torch.randn(*s, dtype=torch.bfloat16) * 0.05)(F, D)),
        }
    _B_in = _B_setup()

    return {
        "A_x": _A_in["x"],
        "A_wqkv": _A_in["wqkv"],
        "A_wo": _A_in["wo"],
        "B_x": _B_in["x"],
        "B_w_gate": _B_in["w_gate"],
        "B_w_up": _B_in["w_up"],
        "B_w_down": _B_in["w_down"],
    }

def reference(A_x, A_wqkv, A_wo, B_x, B_w_gate, B_w_up, B_w_down):
    def _A_ref(x, wqkv, wo):
        B, S, D = x.shape
        H = 32; Dh = D // H
        qkv = (lambda x, *d: x.permute(*d))((x @ wqkv).reshape(B, S, 3, H, Dh), 2, 0, 3, 1, 4)
        q, k, v = qkv[0], qkv[1], qkv[2]
        phi = lambda t: torch.where(t > 0, t + 1, torch.exp(t)) + 1e-6
        pq, pk = phi(q), phi(k)
        kv = torch.einsum("bhsd,bhse->bhde", pk, v)
        z = torch.einsum("bhsd->bhd", pk)
        num = torch.einsum("bhqd,bhde->bhqe", pq, kv)
        den = torch.einsum("bhqd,bhd->bhq", pq, z)[..., None] + 1e-6
        o = num / den
        return (lambda x, *d: x.permute(*d))(o, 0, 2, 1, 3).reshape(B, S, D) @ wo

    def _B_ref(x, w_gate, w_up, w_down):
        return (_gelu(x @ w_gate) * (x @ w_up)) @ w_down

    x = A_x
    x = x + _A_ref(_layernorm(x, axis=-1), A_wqkv, A_wo)
    x = x + _B_ref(_layernorm(x, axis=-1), B_w_gate, B_w_up, B_w_down)
    x = x + _A_ref(_layernorm(x, axis=-1), A_wqkv, A_wo)
    x = x + _B_ref(_layernorm(x, axis=-1), B_w_gate, B_w_up, B_w_down)
    return x
```

```python
import re
import itertools

REG_RE = re.compile(r'\b([vas])\[(\d+):(\d+)\]|\b([vas])(\d+)\b|\b(vcc|exec|m0|scc)\b')

TRANS = ('v_exp_f32', 'v_log_f32', 'v_rcp_f32', 'v_rsq_f32', 'v_sqrt_f32', 'v_sin_f32', 'v_cos_f32',
         'v_rcp_iflag_f32')
RMW = ('v_fmac_f32', 'v_dot2c_f32_bf16', 'v_pk_fmac_f16', 'v_dot2c_f32_f16')


def regs_of(op):
    out = []
    for m in REG_RE.finditer(op):
        if m.group(1):
            out += [f'{m.group(1)}{i}' for i in range(int(m.group(2)), int(m.group(3)) + 1)]
        elif m.group(4):
            out.append(f'{m.group(4)}{m.group(5)}')
        else:
            out.append(m.group(6))
    return out


def split_ops(s):
    ops, depth, cur = [], 0, ''
    for ch in s:
        if ch == '[':
            depth += 1
        if ch == ']':
            depth -= 1
        if ch == ',' and depth == 0:
            ops.append(cur.strip())
            cur = ''
        else:
            cur += ch
    if cur.strip():
        ops.append(cur.strip())
    return ops


class Ins:
    __slots__ = ('text', 'mn', 'kind', 'defs', 'uses', 'A', 'B', 'C', 'passes', 'tag', 'need_vm', 'need_lgkm',
                 'nops', 'wide', 'waittags', 'data', 'comment', 'lgkm_all', 'dpp', 'trans', 'dl')

    def __init__(self, text, tag=None):
        self.text = text.strip()
        self.tag = tag
        self.need_vm = None
        self.need_lgkm = None
        self.nops = 0
        self.waittags = None
        self.lgkm_all = False
        self.parse()

    def parse(self):
        t = self.text.split(';')[0].strip()
        parts = t.split(None, 1)
        mn = parts[0]
        rest = parts[1] if len(parts) > 1 else ''
        self.mn = mn
        base = re.sub(r'_e(32|64)$|_dpp$|_sdwa$', '', mn)
        self.defs, self.uses = [], []
        self.A = self.B = self.C = ()
        self.passes = 0
        self.wide = False
        self.data = ()
        self.dpp = ('row_' in rest or 'quad_perm' in rest or mn.endswith('_dpp'))
        self.trans = False
        self.dl = False
        ops = split_ops(rest)
        R = [regs_of(o.split(' ')[0]) if not o.startswith('abs(') else regs_of(o) for o in ops]
        flat = lambda l: [x for y in l for x in y]
        if mn.startswith('v_mfma'):
            self.kind = 'mfma'
            self.defs = R[0]
            self.A, self.B, self.C = R[1], R[2], R[3]
            self.uses = R[1] + R[2] + R[3] + ['exec']
            if '32x32x16' in mn or '32x32x8' in mn:
                self.passes = 8
            elif '16x16x32' in mn or '16x16x16' in mn:
                self.passes = 4
            else:
                raise ValueError(mn)
        elif mn.startswith('v_cmp'):
            assert not mn.startswith('v_cmpx')
            self.kind = 'valu'
            self.defs = R[0]
            self.uses = flat(R[1:]) + ['exec']
        elif base in ('v_readfirstlane_b32', 'v_readlane_b32'):
            self.kind = 'readlane'
            self.defs = R[0]
            self.uses = flat(R[1:])
        elif base.startswith('v_permlane') or base == 'v_swap_b32':
            self.kind = 'permlane' if base.startswith('v_permlane') else 'valu'
            self.defs = R[0] + R[1]
            self.uses = R[0] + R[1] + ['exec']
        elif mn.startswith('v_'):
            self.kind = 'valu'
            if base == 'v_nop':
                pass
            elif base in ('v_add_co_u32', 'v_sub_co_u32', 'v_addc_co_u32', 'v_subb_co_u32', 'v_subrev_co_u32',
                          'v_div_scale_f32', 'v_mad_u64_u32'):
                self.defs = R[0] + R[1]
                self.uses = flat(R[2:]) + ['exec']
            else:
                self.defs = R[0]
                self.uses = flat(R[1:]) + ['exec']
                if base in RMW or self.dpp or base == 'v_writelane_b32':
                    self.uses += R[0]
                if base == 'v_div_fmas_f32':
                    self.uses.append('vcc')
            self.trans = base in TRANS
            self.dl = base.startswith('v_dot')
        elif mn.startswith('buffer_load') or mn.startswith('global_load'):
            islds = bool(re.search(r'\blds\b', rest)) or '_lds_' in mn
            if islds:
                self.kind = 'vmem_dma'
                self.uses = flat(R) + ['m0', 'exec']
            else:
                self.kind = 'vmem_load'
                self.defs = R[0]
                self.uses = flat(R[1:]) + ['exec']
        elif mn.startswith('buffer_store') or mn.startswith('global_store'):
            self.kind = 'vmem_store'
            self.uses = flat(R) + ['exec']
            self.wide = mn.endswith('x4') or mn.endswith('x3')
            self.data = R[0] if mn.startswith('buffer') else R[1]
        elif mn.startswith('buffer_atomic') or mn.startswith('global_atomic'):
            ret = bool(re.search(r'\bsc0\b', rest))
            self.uses = flat(R) + ['exec']
            if ret:
                self.kind = 'vmem_load'
                self.defs = R[0]
            else:
                self.kind = 'vmem_store'
        elif mn.startswith('buffer_wbl2') or mn.startswith('buffer_inv'):
            self.kind = 'vmem_store'
        elif mn.startswith('ds_'):
            if mn.startswith('ds_read') or mn.startswith('ds_bpermute') or mn.startswith('ds_permute') \
                    or mn.startswith('ds_swizzle') or '_rtn' in mn:
                self.kind = 'lds_read'
                self.defs = R[0]
                self.uses = flat(R[1:]) + ['exec']
            else:
                self.kind = 'lds_write'
                self.uses = flat(R) + ['exec']
        elif mn.startswith('s_load') or mn.startswith('s_memtime') or mn.startswith('s_memrealtime') \
                or mn.startswith('s_buffer_load'):
            self.kind = 'smem'
            self.defs = R[0]
            self.uses = flat(R[1:])
        elif mn in ('s_barrier',):
            self.kind = 'barrier'
        elif mn == 's_nop':
            self.kind = 'nop'
        elif mn == 's_waitcnt':
            self.kind = 'waitcnt'
        elif mn.startswith('s_cbranch') or mn == 's_branch':
            self.kind = 'branch'
            if 'scc' in mn:
                self.uses = ['scc']
            elif 'vcc' in mn:
                self.uses = ['vcc']
            elif 'exec' in mn:
                self.uses = ['exec']
        elif mn in ('s_endpgm', 's_setprio', 's_sleep', 's_sethalt'):
            self.kind = 'misc'
        elif mn.startswith('s_cmp') or mn.startswith('s_bitcmp'):
            self.kind = 'salu'
            self.defs = ['scc']
            self.uses = flat(R)
        elif mn.startswith('s_'):
            self.kind = 'salu'
            self.defs = R[0] + ['scc']
            self.uses = flat(R[1:])
            if 'saveexec' in mn:
                self.defs += ['exec']
                self.uses += ['exec']
            if mn in ('s_addc_u32', 's_subb_u32', 's_cselect_b32', 's_cselect_b64'):
                self.uses.append('scc')
            if mn in ('s_addk_i32', 's_mulk_i32'):
                self.uses += R[0]
            if mn in ('s_mov_b32', 's_mov_b64', 's_movk_i32', 's_mul_i32', 's_cselect_b32', 's_cselect_b64',
                      's_mul_hi_u32', 's_getreg_b32', 's_mulk_i32'):
                self.defs = R[0]
        else:
            raise ValueError('unknown instr ' + self.text)

    def is_valu(self):
        return self.kind in ('valu', 'readlane', 'permlane')


class Wait:
    kind = 'pwait'

    def __init__(self, tags, lgkm=False, vm_all=False):
        self.tags = tags
        self.lgkm = lgkm
        self.vm_all = vm_all
        self.need_vm = None
        self.need_lgkm = None
        self.defs = []
        self.uses = []


class Label:
    kind = 'label'

    def __init__(self, name):
        self.name = name


class Raw:
    kind = 'raw'

    def __init__(self, text):
        self.text = text


class Loop:
    kind = 'loop'

    def __init__(self, count):
        self.count = count
        self.body = []


class Cond:
    kind = 'cond'

    def __init__(self, name):
        self.name = name
        self.body = []
        self.terminal = False


class TagIter:
    pass


class Kernel:
    uid = 0

    def __init__(self, name):
        self.name = name
        self.items = []
        self.stack = [self.items]
        self.conds = []

    def e(self, text, tag=None):
        for line in text.strip().split('\n'):
            line = line.strip()
            if not line or line.startswith(';'):
                continue
            i = Ins(line, tag)
            self.stack[-1].append(i)
        return self

    def raw(self, text):
        self.stack[-1].append(Raw(text))

    def label(self, name):
        self.stack[-1].append(Label(name))

    def wait(self, *tags, lgkm=False, vm_all=False):
        self.stack[-1].append(Wait(list(tags), lgkm, vm_all))

    def barrier(self, *tags, lgkm=True, vm_all=False):
        self.wait(*tags, lgkm=lgkm, vm_all=vm_all)
        self.e('s_barrier')

    def newlabel(self, p='L'):
        Kernel.uid += 1
        return f'{p}_{self.name}_{Kernel.uid}'

    class _Ctx:
        def __init__(self, k, node, pre, post):
            self.k, self.node, self.pre, self.post = k, node, pre, post

        def __enter__(self):
            self.k.stack[-1].append(self.node)
            self.k.stack.append(self.node.body)
            self.pre()
            return self.node

        def __exit__(self, *a):
            self.post()
            self.k.stack.pop()

    def loop(self, count, creg, align=True):
        lab = self.newlabel('LP')
        self.e(f's_mov_b32 {creg}, {count}')
        node = Loop(count)

        def pre():
            if align:
                self.raw('.p2align 3\n')
            self.label(lab)

        def post():
            self.e(f's_sub_u32 {creg}, {creg}, 1')
            self.e(f's_cmp_lg_u32 {creg}, 0')
            self.e(f's_cbranch_scc1 {lab}')
        return Kernel._Ctx(self, node, pre, post)

    def cond(self, name, skip_branch, terminal=False):
        lab = self.newlabel('SK')
        self.e(f'{skip_branch} {lab}')
        node = Cond(name)
        node.terminal = terminal
        if name not in self.conds:
            self.conds.append(name)
        outer = self

        def pre():
            pass

        def post():
            pass
        ctx = Kernel._Ctx(self, node, pre, post)
        orig_exit = ctx.__exit__

        class C:
            def __enter__(s):
                return ctx.__enter__()

            def __exit__(s, *a):
                orig_exit(*a)
                outer.label(lab)
        return C()

    def trace(self, scen):
        out = []

        class Stop(Exception):
            pass

        def walk(items, it):
            for x in items:
                if x.kind == 'loop':
                    for i in range(x.count):
                        walk(x.body, it + (i,))
                elif x.kind == 'cond':
                    if scen.get(x.name, False):
                        walk(x.body, it)
                        if x.terminal:
                            raise Stop()
                elif x.kind in ('label', 'raw'):
                    continue
                else:
                    out.append((x, it))
        try:
            walk(self.items, ())
        except Stop:
            pass
        return out

    def scenarios(self):
        n = self.conds
        if len(n) <= 6:
            return [dict(zip(n, c)) for c in itertools.product([False, True], repeat=len(n))]
        sc = [dict.fromkeys(n, False), dict.fromkeys(n, True)]
        for x in n:
            d = dict.fromkeys(n, False)
            d[x] = True
            sc.append(d)
            d = dict.fromkeys(n, True)
            d[x] = False
            sc.append(d)
        return sc

    @staticmethod
    def _tag(t, it):
        return t(it) if callable(t) else t

    def solve_waits(self):
        changed = True
        while changed:
            changed = False
            for scen in self.scenarios():
                tr = self.trace(scen)
                vm = []
                lg = []

                def apply(x):
                    nonlocal vm, lg
                    if x.need_vm is not None and len(vm) > x.need_vm:
                        vm = vm[len(vm) - x.need_vm:] if x.need_vm else []
                    if x.need_lgkm is not None:
                        if x.need_lgkm == 0:
                            lg = []
                        elif not any(s for _, s in lg) and len(lg) > x.need_lgkm:
                            lg = lg[len(lg) - x.need_lgkm:]

                def req_vm(x, n):
                    nonlocal changed
                    n = min(n, 63)
                    if x.need_vm is None or n < x.need_vm:
                        x.need_vm = n
                        changed = True

                def req_lg(x, n):
                    nonlocal changed
                    n = min(n, 15)
                    if x.need_lgkm is None or n < x.need_lgkm:
                        x.need_lgkm = n
                        changed = True

                for x, it in tr:
                    if x.kind == 'pwait':
                        if x.vm_all and vm:
                            req_vm(x, 0)
                        tags = set(self._tag(t, it) for t in x.tags)
                        for idx in range(len(vm) - 1, -1, -1):
                            if vm[idx][1] in tags and vm[idx][1] is not None:
                                req_vm(x, len(vm) - 1 - idx)
                                break
                        if x.lgkm and lg:
                            req_lg(x, 0)
                        apply(x)
                        continue
                    if x.kind == 'waitcnt':
                        m = re.search(r'vmcnt\((\d+)\)', x.text)
                        if m and len(vm) > int(m.group(1)):
                            n = int(m.group(1))
                            vm = vm[len(vm) - n:] if n else []
                        m = re.search(r'lgkmcnt\((\d+)\)', x.text)
                        if m:
                            n = int(m.group(1))
                            if n == 0:
                                lg = []
                            elif not any(s for _, s in lg) and len(lg) > n:
                                lg = lg[len(lg) - n:]
                        continue
                    touched = set(x.defs) | set(x.uses)
                    for idx in range(len(vm) - 1, -1, -1):
                        if vm[idx][0] & touched:
                            req_vm(x, len(vm) - 1 - idx)
                            break
                    for idx in range(len(lg) - 1, -1, -1):
                        if lg[idx][0] & touched:
                            if any(s for _, s in lg):
                                req_lg(x, 0)
                            else:
                                req_lg(x, len(lg) - 1 - idx)
                            break
                    apply(x)
                    if x.kind in ('vmem_load', 'vmem_store', 'vmem_dma'):
                        vm.append((set(x.defs), self._tag(x.tag, it)))
                        if len(vm) > 63:
                            vm = vm[-63:]
                    elif x.kind in ('lds_read', 'lds_write'):
                        lg.append((set(x.defs), False))
                        if len(lg) > 15 and not any(s for _, s in lg):
                            lg = lg[-15:]
                    elif x.kind == 'smem':
                        lg.append((set(x.defs), True))

    @staticmethod
    def hazard(p, c):
        need = 0
        pd, pu = set(p.defs), set(p.uses)
        cd, cu = set(c.defs), set(c.uses)
        vec = lambda s: {r for r in s if r[0] in 'va' and r not in ('vcc',)}
        sca = lambda s: {r for r in s if (r[0] == 's' and r != 'scc') or r == 'vcc'}
        if p.kind == 'mfma':
            D = pd
            big = p.passes == 8
            if c.kind == 'mfma':
                if D & set(c.C):
                    if list(c.C) == list(p.defs) and c.passes == p.passes:
                        pass
                    else:
                        need = max(need, 10 if big else 6)
                if D & (set(c.A) | set(c.B)):
                    need = max(need, 12 if big else 8)
                if D & cd and not (D & set(c.C)):
                    need = max(need, 12 if big else 8)
            else:
                if D & (cd | cu):
                    need = max(need, 12 if big else 8)
                if c.is_valu() and (set(p.C) & cd):
                    need = max(need, 7 if big else 3)
        if p.is_valu():
            w = vec(pd)
            if c.kind == 'mfma' and (w & cu):
                need = max(need, 2)
            if p.trans and (w & (cu | cd)) and not (c.is_valu() and c.trans):
                need = max(need, 1)
            if c.kind == 'readlane' and (w & cu):
                need = max(need, 1)
            if c.kind == 'permlane' and (w & cu):
                need = max(need, 2)
            if c.is_valu() and c.dpp and (w & cu):
                need = max(need, 2)
            if p.dl and (w & (cu | cd)):
                if not (c.is_valu() and c.dl and c.mn == p.mn):
                    need = max(need, 3)
                else:
                    need = max(need, 3 if (w & set(c.uses[:-2])) - set(c.defs) else 0)
            s = sca(pd)
            if s & cu:
                if c.is_valu() or c.kind == 'mfma':
                    need = max(need, 4 if (c.kind == 'readlane' or c.mn.startswith('v_div_fmas')
                                           or c.mn.startswith('v_writelane')) else 2)
                elif c.kind.startswith('vmem'):
                    need = max(need, 5)
                elif c.kind in ('salu', 'smem', 'branch'):
                    need = max(need, 1)
                elif c.kind.startswith('lds'):
                    need = max(need, 2)
        if p.kind == 'salu' and 'm0' in pd and (c.kind == 'vmem_dma' or 'addtid' in getattr(c, 'mn', '')):
            need = max(need, 1)
        if p.kind == 'vmem_store' and p.wide and (set(p.data) & cd):
            need = max(need, 2)
        return need

    def solve_hazards(self):
        changed = True
        while changed:
            changed = False
            for scen in self.scenarios():
                tr = [x for x, it in self.trace(scen)]
                hist = []
                pos = 0
                for x in tr:
                    if x.kind == 'pwait':
                        if x.need_vm is not None or x.need_lgkm is not None:
                            pos += 1
                        continue
                    if x.need_vm is not None or x.need_lgkm is not None:
                        pos += 1
                    pos += x.nops
                    need_extra = 0
                    for p, ppos in reversed(hist):
                        dist = pos - ppos - 1
                        if dist >= 12:
                            break
                        h = self.hazard(p, x)
                        if h > dist:
                            need_extra = max(need_extra, h - dist)
                    if need_extra:
                        x.nops += need_extra
                        pos += need_extra
                        changed = True
                    if x.kind == 'nop':
                        n = int(x.text.split()[1], 0)
                        pos += n + 1
                        continue
                    hist.append((x, pos))
                    if len(hist) > 16:
                        hist.pop(0)
                    pos += 1

    def render(self):
        self.solve_waits()
        self.solve_hazards()
        out = []

        def w(x):
            parts = []
            if x.need_vm is not None:
                parts.append(f'vmcnt({x.need_vm})')
            if x.need_lgkm is not None:
                parts.append(f'lgkmcnt({x.need_lgkm})')
            if parts:
                out.append('    s_waitcnt ' + ' '.join(parts))

        def walk(items):
            for x in items:
                if x.kind in ('loop', 'cond'):
                    walk(x.body)
                elif x.kind == 'label':
                    out.append(f'{x.name}:')
                elif x.kind == 'raw':
                    out.append(x.text.rstrip('\n'))
                elif x.kind == 'pwait':
                    w(x)
                else:
                    w(x)
                    n = x.nops
                    while n > 0:
                        k = min(n, 16)
                        out.append(f'    s_nop {k - 1}')
                        n -= k
                    out.append('    ' + x.text)
        walk(self.items)
        return '\n'.join(out)

    def max_regs(self):
        mv = ma = ms = -1

        def walk(items):
            nonlocal mv, ma, ms
            for x in items:
                if x.kind in ('loop', 'cond'):
                    walk(x.body)
                elif isinstance(x, Ins):
                    for r in list(x.defs) + list(x.uses):
                        if r in ('vcc', 'exec', 'm0', 'scc'):
                            continue
                        n = int(r[1:])
                        if r[0] == 'v':
                            mv = max(mv, n)
                        elif r[0] == 'a':
                            ma = max(ma, n)
                        else:
                            ms = max(ms, n)
        walk(self.items)
        return mv, ma, ms


def vr(base, n=1, p='v'):
    return f'{p}{base}' if n == 1 else f'{p}[{base}:{base + n - 1}]'


def sr(base, n=1):
    return vr(base, n, 's')


def ar(base, n=1):
    return vr(base, n, 'a')
```

```python
import sys
import struct
from asmlib import *

S, D, F, H, DH = 2048, 576, 4608, 32, 18
AFL_ROW = D * 32
AFL_SZ = 128 * AFL_ROW
H_ROW = F * 32
H_SZ = 128 * H_ROW

_off = 0


def alloc(n, al=4096):
    global _off
    _off = (_off + al - 1) // al * al
    o = _off
    _off += n
    return o


WS_XA = alloc(AFL_SZ)
WS_XN = alloc(AFL_SZ)
WS_X1 = alloc(AFL_SZ)
WS_PQ = alloc(128 * 32 * 1024)
KVZ_SZ = 16 * 7 * 1024
WS_KVZ = alloc(KVZ_SZ)
ST_SZ = 2048 * 24 * 8
WS_ST = alloc(ST_SZ)
WS_H = alloc(H_SZ)
WS_P = alloc(4 * AFL_SZ)
WQKV_SZ = 16 * 18 * 7 * 1024
WS_WQKV = alloc(WQKV_SZ)
WO_SZ = 720 * 1024
WS_WO = alloc(WO_SZ)
WGU_SZ = 288 * 36 * 1024
WS_WGU = alloc(WGU_SZ)
WD_SZ = 36 * 144 * 1024
WS_WD = alloc(WD_SZ)
CS_SZ = 288 * 2 * 64
WS_CS = alloc(CS_SZ)
WS_END = _off

ARG = dict(x=0, wqkv=8, wo=16, bx=24, wg=32, wu=40, wd=48, out=56, dbg=64, ws=72)
OOB = 0x40000000


def f32(x):
    return '0x%08x' % struct.unpack('<I', struct.pack('<f', x))[0]


def srd(k, d, p, off, size):
    if off == 0:
        k.e(f's_mov_b32 s{d}, s{p}')
        k.e(f's_mov_b32 s{d + 1}, s{p + 1}')
    else:
        k.e(f's_add_u32 s{d}, s{p}, {off}')
        k.e(f's_addc_u32 s{d + 1}, s{p + 1}, 0')
    k.e(f's_mov_b32 s{d + 2}, {size}')
    k.e(f's_mov_b32 s{d + 3}, 0x20000')


def MF(acc, a, b, c=None):
    def r(x):
        if isinstance(x, tuple):
            return vr(x[1], 4, x[0])
        return vr(x, 4)
    cc = r(acc) if c is None else c
    return f'v_mfma_f32_16x16x32_bf16 {r(acc)}, {r(a)}, {r(b)}, {cc}'


def bf16r(k, dst, src):
    k.e(f'v_cvt_pk_bf16_f32 v{dst}, v{src}, v{src}')
    k.e(f'v_lshlrev_b32 v{dst}, 16, v{dst}')


def allreduce_hi(k, v, t, levels=(16, 32)):
    for lv in levels:
        k.e(f'v_mov_b32 v{t}, v{v}')
        k.e(f'v_permlane{lv}_swap_b32 v{v}, v{t}')
        k.e(f'v_add_f32 v{v}, v{v}, v{t}')


def ln_stats(k, s1, s2, m, rs, t, var_out=None):
    k.e(f'v_mul_f32 v{m}, {f32(1.0 / D)}, v{s1}')
    k.e(f'v_mul_f32 v{t}, v{m}, v{m}')
    k.e(f'v_mov_b32 v{rs}, {f32(1.0 / D)}')
    k.e(f'v_fma_f32 v{t}, v{s2}, v{rs}, -v{t}')
    k.e(f'v_max_f32 v{t}, 0, v{t}')
    bf16r(k, t, t)
    k.e(f'v_add_f32 v{t}, {f32(1e-5)}, v{t}')
    bf16r(k, t, t)
    k.e(f'v_sqrt_f32 v{t}, v{t}')
    bf16r(k, t, t)
    if var_out is not None:
        k.e(f'v_mul_f32 v{var_out}, v{t}, v{t}')
    k.e(f'v_rcp_f32 v{rs}, v{t}')
    bf16r(k, m, m)


def ln_body(k, mode):
    k.e('v_and_b32 v1, 7, v0')
    k.e('v_lshrrev_b32 v2, 3, v0')
    k.e('s_lshr_b32 s20, s2, 1')
    k.e(f's_mul_i32 s20, s20, {AFL_ROW}')
    k.e('s_and_b32 s21, s2, 1')
    k.e('s_lshl_b32 s21, s21, 7')
    k.e('s_add_u32 s20, s20, s21')
    k.e('v_lshlrev_b32 v3, 8, v2')
    k.e('v_lshl_add_u32 v3, v1, 4, v3')
    k.e('v_add_u32 v3, s20, v3')
    k.e(f's_mul_i32 s21, s2, {8 * 1152}')
    k.e('v_mul_u32_u24 v4, 1152, v1')
    k.e('v_lshl_add_u32 v4, v2, 4, v4')
    k.e('v_add_u32 v4, s21, v4')
    X = 32
    if mode == 'k0':
        srd(k, 8, 6, 0, AFL_SZ)
        k.e('buffer_load_dwordx4 v[8:11], v4, s[8:11], 0 offen')
        srd(k, 12, 4, WS_XA, AFL_SZ)
        srd(k, 16, 4, WS_XN, AFL_SZ)
        srd(k, 24, 4, WS_KVZ, KVZ_SZ)
        k.e('v_mov_b32 v12, 0\nv_mov_b32 v13, 0\nv_mov_b32 v14, 0\nv_mov_b32 v15, 0')
        k.e('s_mul_i32 s21, s2, 448')
        k.e('v_lshlrev_b32 v5, 4, v0')
        k.e(f'v_mov_b32 v6, {OOB}')
        k.e('v_cmp_gt_u32 vcc, 28, v0')
        k.e('v_cndmask_b32 v5, v6, v5, vcc')
        k.e('buffer_store_dwordx4 v[12:15], v5, s[24:27], s21 offen')
        k.e('buffer_store_dwordx4 v[8:11], v3, s[12:15], 0 offen')
        for j in range(4):
            k.e(f'v_lshlrev_b32 v{X + 2 * j}, 16, v{8 + j}')
            k.e(f'v_and_b32 v{X + 2 * j + 1}, 0xffff0000, v{8 + j}')
    else:
        srd(k, 8, 4, WS_X1, AFL_SZ)
        srd(k, 24, 4, WS_P, 4 * AFL_SZ)
        for p in range(4):
            k.e(f's_mov_b32 s{28 + p}, {p * AFL_SZ}')
            k.e(f'buffer_load_dwordx4 v[{12 + 4 * p}:{15 + 4 * p}], v3, s[24:27], s{28 + p} offen')
        k.e('buffer_load_dwordx4 v[8:11], v3, s[8:11], 0 offen')
        if mode == 'mid':
            srd(k, 12, 4, WS_XA, AFL_SZ)
            srd(k, 16, 4, WS_XN, AFL_SZ)
        else:
            srd(k, 12, 6, 0, AFL_SZ)
        for p in range(4):
            for j in range(4):
                src = 12 + 4 * p + j
                if p == 0:
                    k.e(f'v_lshlrev_b32 v{X + 2 * j}, 16, v{src}')
                    k.e(f'v_and_b32 v{X + 2 * j + 1}, 0xffff0000, v{src}')
                else:
                    k.e(f'v_lshlrev_b32 v40, 16, v{src}')
                    k.e(f'v_and_b32 v41, 0xffff0000, v{src}')
                    k.e(f'v_add_f32 v{X + 2 * j}, v{X + 2 * j}, v40')
                    k.e(f'v_add_f32 v{X + 2 * j + 1}, v{X + 2 * j + 1}, v41')
        for j in range(4):
            a, b = X + 2 * j, X + 2 * j + 1
            k.e(f'v_cvt_pk_bf16_f32 v40, v{a}, v{b}')
            k.e(f'v_lshlrev_b32 v{a}, 16, v40')
            k.e(f'v_and_b32 v{b}, 0xffff0000, v40')
            k.e(f'v_lshlrev_b32 v40, 16, v{8 + j}')
            k.e(f'v_and_b32 v41, 0xffff0000, v{8 + j}')
            k.e(f'v_add_f32 v{a}, v{a}, v40')
            k.e(f'v_add_f32 v{b}, v{b}, v41')
            k.e(f'v_cvt_pk_bf16_f32 v{44 + j}, v{a}, v{b}')
        if mode == 'final':
            k.e('buffer_store_dwordx4 v[44:47], v4, s[12:15], 0 offen')
            k.e('s_endpgm')
            return
        k.e('buffer_store_dwordx4 v[44:47], v3, s[12:15], 0 offen')
        for j in range(4):
            k.e(f'v_lshlrev_b32 v{X + 2 * j}, 16, v{44 + j}')
            k.e(f'v_and_b32 v{X + 2 * j + 1}, 0xffff0000, v{44 + j}')
    k.e(f'v_add_f32 v50, v{X}, v{X + 1}')
    k.e(f'v_mul_f32 v51, v{X}, v{X}')
    k.e(f'v_fmac_f32 v51, v{X + 1}, v{X + 1}')
    for j in range(2, 8):
        k.e(f'v_add_f32 v50, v50, v{X + j}')
        k.e(f'v_fmac_f32 v51, v{X + j}, v{X + j}')
    for v in (50, 51):
        k.e(f'v_add_f32_dpp v{v}, v{v}, v{v} row_ror:8 row_mask:0xf bank_mask:0xf')
        allreduce_hi(k, v, 52)
    k.e('v_lshrrev_b32 v53, 6, v0')
    k.e('v_lshlrev_b32 v53, 6, v53')
    k.e('v_lshl_add_u32 v53, v1, 3, v53')
    k.e('ds_write_b64 v53, v[50:51]')
    k.barrier()
    k.e('v_lshlrev_b32 v53, 3, v1')
    for w in range(9):
        k.e(f'ds_read_b64 v[{56 + 2 * w}:{57 + 2 * w}], v53 offset:{w * 64}')
    k.e('v_add_f32 v50, v56, v58')
    k.e('v_add_f32 v51, v57, v59')
    for w in range(2, 9):
        k.e(f'v_add_f32 v50, v50, v{56 + 2 * w}')
        k.e(f'v_add_f32 v51, v51, v{57 + 2 * w}')
    ln_stats(k, 50, 51, 52, 53, 54)
    for j in range(4):
        a, b = X + 2 * j, X + 2 * j + 1
        k.e(f'v_sub_f32 v{a}, v{a}, v52')
        k.e(f'v_sub_f32 v{b}, v{b}, v52')
        k.e(f'v_cvt_pk_bf16_f32 v40, v{a}, v{b}')
        k.e(f'v_lshlrev_b32 v{a}, 16, v40')
        k.e(f'v_and_b32 v{b}, 0xffff0000, v40')
        k.e(f'v_mul_f32 v{a}, v{a}, v53')
        k.e(f'v_mul_f32 v{b}, v{b}, v53')
        k.e(f'v_cvt_pk_bf16_f32 v{56 + j}, v{a}, v{b}')
    k.e('buffer_store_dwordx4 v[56:59], v3, s[16:19], 0 offen')
    k.e('s_endpgm')


K0_GRID = 776
K0_LDS = 73728


def gen_k0():
    k = Kernel('k0')
    k.e(f's_load_dwordx2 s[4:5], s[0:1], {ARG["ws"]}')
    k.e(f's_load_dwordx2 s[6:7], s[0:1], {ARG["x"]}')
    k.e(f's_load_dwordx4 s[40:43], s[0:1], {ARG["wqkv"]}')
    k.e(f's_load_dwordx4 s[44:47], s[0:1], {ARG["wg"]}')
    k.e(f's_load_dwordx2 s[48:49], s[0:1], {ARG["wd"]}')
    k.e('v_lshrrev_b32 v1, 6, v0')
    k.e('v_readfirstlane_b32 s3, v1')
    k.e('v_and_b32 v1, 63, v0')
    k.e(f's_cmp_ge_u32 s2, {K0_GRID}')
    with k.cond('exit', 's_cbranch_scc0', terminal=True):
        k.e('s_endpgm')
    k.e('s_cmp_ge_u32 s2, 520')
    with k.cond('ln', 's_cbranch_scc0', terminal=True):
        k.e('s_sub_u32 s2, s2, 520')
        ln_body(k, 'k0')
    k.e('s_cmp_ge_u32 s2, 216')
    with k.cond('gather', 's_cbranch_scc0', terminal=True):
        k0_gather(k)
    k0_fast(k)
    return k


def k0_gather(k):
    k.e('v_lshrrev_b32 v2, 4, v1')
    k.e('v_and_b32 v3, 15, v1')
    k.e('s_sub_u32 s2, s2, 216')
    k.e('s_mul_i32 s20, s2, 9')
    k.e('s_add_u32 s20, s20, s3')
    k.e('s_mul_i32 s21, s20, 9363')
    k.e('s_lshr_b32 s21, s21, 16')
    k.e('s_mul_i32 s22, s21, 7')
    k.e('s_sub_u32 s22, s20, s22')
    k.e('s_mul_i32 s23, s21, 3641')
    k.e('s_lshr_b32 s23, s23, 16')
    k.e('s_mul_i32 s24, s23, 18')
    k.e('s_sub_u32 s24, s21, s24')
    srd(k, 8, 40, 0, D * 3 * D * 2)
    srd(k, 12, 4, WS_WQKV, WQKV_SZ)
    k.e('s_lshl_b32 s25, s20, 10')
    for j in range(8):
        k.e(f's_mov_b32 s{50 + j}, {j * 3456}')
    k.e('s_lshr_b32 s26, s22, 1')
    k.e('s_mul_i32 s26, s26, 576')
    k.e('s_mul_i32 s27, s23, 36')
    k.e('s_add_u32 s26, s26, s27')
    k.e('s_and_b32 s28, s22, 1')
    k.e('s_mul_i32 s28, s28, 18')
    k.e('s_add_u32 s26, s26, s28')
    k.e('v_add_u32 v4, s26, v3')
    k.e('v_lshrrev_b32 v5, 2, v3')
    k.e('v_mul_u32_u24 v5, 576, v5')
    k.e('v_bfe_u32 v6, v3, 1, 1')
    k.e('v_mul_u32_u24 v6, 18, v6')
    k.e('v_add_u32 v5, v5, v6')
    k.e('v_and_b32 v6, 1, v3')
    k.e('v_add3_u32 v5, v5, v6, 16')
    k.e('v_add_u32 v5, s27, v5')
    k.e(f'v_mov_b32 v6, {OOB // 2}')
    k.e('v_cmp_gt_u32 vcc, 12, v3')
    k.e('v_cndmask_b32 v5, v6, v5, vcc')
    k.e('s_cmp_eq_u32 s22, 6')
    k.e('s_cselect_b64 s[30:31], -1, 0')
    k.e('v_cndmask_b32 v4, v4, v5, s[30:31]')
    k.e(f's_mul_i32 s26, s24, {32 * 3456}')
    k.e(f'v_mul_u32_u24 v5, {8 * 3456}, v2')
    k.e('v_lshl_add_u32 v4, v4, 1, v5')
    k.e('v_add_u32 v4, s26, v4')
    k.e('s_cmp_ge_u32 s2, 224')
    with k.cond('wo', 's_cbranch_scc0'):
        k.e('s_sub_u32 s20, s2, 224')
        k.e('s_mul_i32 s21, s20, 205')
        k.e('s_lshr_b32 s21, s21, 10')
        k.e('s_mul_i32 s22, s21, 5')
        k.e('s_sub_u32 s22, s20, s22')
        k.e('s_lshr_b32 s23, s21, 2')
        k.e('s_and_b32 s24, s21, 3')
        srd(k, 8, 42, 0, D * D * 2)
        srd(k, 12, 4, WS_WO, WO_SZ)
        k.e('s_mul_i32 s25, s20, 9')
        k.e('s_add_u32 s25, s25, s3')
        k.e('s_lshl_b32 s25, s25, 10')
        k.e('s_mul_i32 s26, s23, 144')
        k.e('s_lshl_b32 s27, s3, 4')
        k.e('s_add_u32 s26, s26, s27')
        k.e('v_bfe_u32 v4, v3, 2, 1')
        k.e('v_lshlrev_b32 v4, 3, v4')
        k.e('v_lshrrev_b32 v5, 3, v3')
        k.e('v_lshl_add_u32 v4, v5, 2, v4')
        k.e('v_and_b32 v5, 3, v3')
        k.e('v_add3_u32 v4, v4, v5, s26')
        k.e('s_lshl_b32 s26, s24, 3')
        k.e('s_lshl_b32 s27, s22, 1')
        k.e('s_add_u32 s27, s26, s27')
        k.e(f's_mul_i32 s27, s27, {18 * 1152}')
        k.e(f's_mul_i32 s26, s26, {18 * 1152}')
        k.e(f's_add_u32 s26, s26, {16 * 1152}')
        k.e('s_cmp_eq_u32 s22, 4')
        k.e('s_cselect_b32 s26, s26, s27')
        k.e(f's_mov_b32 s27, {18 * 1152}')
        k.e(f's_mov_b32 s28, {4 * 1152}')
        k.e(f's_cselect_b32 s27, s27, s28')
        k.e('v_mul_lo_u32 v5, s27, v2')
        k.e('v_lshl_add_u32 v4, v4, 1, v5')
        k.e('v_add_u32 v4, s26, v4')
        for j in range(8):
            main = ((j >> 2) * 18 + (j & 3)) * 1152
            left = ((j >> 1) * 72 + (j & 1)) * 1152 if j < 4 else OOB // 2
            k.e(f's_mov_b32 s{50 + j}, {main}')
            k.e(f's_mov_b32 s28, {left}')
            k.e(f's_cselect_b32 s{50 + j}, s28, s{50 + j}')
    for j in range(8):
        k.e(f'buffer_load_ushort v{8 + j}, v4, s[8:11], s{50 + j} offen')
    for j in range(4):
        k.e(f'v_lshl_or_b32 v{16 + j}, v{9 + 2 * j}, 16, v{8 + 2 * j}')
    k.e('v_lshlrev_b32 v5, 4, v1')
    k.e('buffer_store_dwordx4 v[16:19], v5, s[12:15], s25 offen')
    k.e('s_endpgm')


def k0_fast(k):
    k.e('s_cmp_ge_u32 s2, 72')
    k.e('s_cselect_b32 s30, 1, 0')
    k.e('s_cselect_b32 s8, s46, s44')
    k.e('s_cselect_b32 s9, s47, s45')
    k.e(f's_mov_b32 s10, {D * F * 2}')
    k.e('s_mov_b32 s11, 0x20000')
    k.e('s_mul_i32 s31, s30, 72')
    k.e('s_sub_u32 s31, s2, s31')
    k.e('s_mov_b32 s20, 9216')
    k.e(f's_mul_i32 s21, s3, {64 * 9216}')
    k.e('s_lshl_b32 s22, s31, 7')
    k.e('s_add_u32 s21, s21, s22')
    k.e(f's_mul_i32 s22, s31, {4 * 36 * 1024}')
    k.e('s_lshl_b32 s23, s3, 12')
    k.e('s_add_u32 s22, s22, s23')
    k.e('s_lshl_b32 s23, s30, 10')
    k.e('s_add_u32 s22, s22, s23')
    for tl in range(4):
        k.e(f's_add_u32 s{24 + tl}, s22, {WS_WGU + tl * 36 * 1024}')
    k.e('s_mov_b32 s28, 2048')
    k.e('s_lshl_b32 s29, s31, 9')
    k.e('s_lshl_b32 s23, s30, 6')
    k.e('s_add_u32 s29, s29, s23')
    k.e(f's_add_u32 s29, s29, {WS_CS}')
    k.e('s_cmp_ge_u32 s2, 144')
    with k.cond('wd', 's_cbranch_scc0'):
        k.e('s_sub_u32 s31, s2, 144')
        k.e('s_mov_b32 s8, s48')
        k.e('s_mov_b32 s9, s49')
        k.e('s_mov_b32 s20, 1152')
        k.e(f's_mul_i32 s21, s31, {64 * 1152}')
        k.e('s_lshl_b32 s22, s3, 7')
        k.e('s_add_u32 s21, s21, s22')
        for tl in range(4):
            k.e(f's_lshl_b32 s22, s3, 2')
            k.e(f's_add_u32 s22, s22, {tl}')
            k.e('s_mul_i32 s23, s22, 57')
            k.e('s_lshr_b32 s23, s23, 9')
            k.e('s_mul_i32 s32, s23, 9')
            k.e('s_sub_u32 s22, s22, s32')
            k.e('s_mul_i32 s23, s23, 144')
            k.e('s_lshl_b32 s32, s31, 1')
            k.e('s_add_u32 s23, s23, s32')
            k.e('s_mul_i32 s23, s23, 9')
            k.e('s_add_u32 s23, s23, s22')
            k.e('s_lshl_b32 s23, s23, 10')
            k.e(f's_add_u32 s{24 + tl}, s23, {WS_WD}')
        k.e('s_mov_b32 s28, 9216')
        k.e(f's_mov_b32 s29, {OOB}')
    srd(k, 12, 4, 0, WS_END)
    k.e('v_lshrrev_b32 v2, 3, v1')
    k.e('v_mul_lo_u32 v2, s20, v2')
    k.e('v_bfe_u32 v3, v1, 4, 1')
    k.e('v_lshlrev_b32 v3, 1, v3')
    k.e('v_and_b32 v4, 7, v1')
    k.e('v_xor_b32 v3, v3, v4')
    k.e('v_lshl_add_u32 v2, v3, 4, v2')
    k.e('v_xor_b32 v3, 64, v2')
    k.e('s_lshl_b32 s33, s3, 13')
    k.e('s_lshl_b32 s34, s20, 3')
    for n in range(8):
        k.e(f's_add_u32 m0, s33, {n * 1024}')
        k.e(f'buffer_load_dwordx4 v{2 + (n & 1)}, s[8:11], s21 offen lds', tag='dma')
        if n < 7:
            k.e('s_add_u32 s21, s21, s34')
    k.e('v_lshrrev_b32 v4, 4, v1')
    k.e('v_bfe_u32 v5, v1, 2, 2')
    k.e('v_lshl_add_u32 v6, v4, 3, v5')
    k.e('v_lshlrev_b32 v6, 7, v6')
    k.e('v_add_u32 v6, s33, v6')
    k.e('v_and_b32 v7, 1, v1')
    k.e('v_lshl_add_u32 v6, v7, 4, v6')
    k.e('v_bfe_u32 v7, v1, 1, 1')
    k.e('v_lshl_add_u32 v6, v7, 3, v6')
    k.e('v_bfe_u32 v7, v1, 3, 1')
    k.e('v_bfe_u32 v5, v1, 4, 1')
    k.e('v_lshl_or_b32 v7, v5, 1, v7')
    for tl in range(4):
        k.e(f'v_xor_b32 v5, {tl}, v7')
        k.e(f'v_lshl_add_u32 v{8 + tl}, v5, 5, v6')
    for j in range(4):
        k.e(f'v_mov_b32 v{12 + j}, 0x3f803f80')
    k.e('v_lshlrev_b32 v5, 4, v1')
    k.wait('dma')
    for ks in range(2):
        for tl in range(4):
            d = 16 + (ks * 4 + tl) * 4
            k.e(f'ds_read_b64_tr_b16 v[{d}:{d + 1}], v{8 + tl} offset:{ks * 4096}')
            k.e(f'ds_read_b64_tr_b16 v[{d + 2}:{d + 3}], v{8 + tl} offset:{ks * 4096 + 512}')
    for ks in range(2):
        for tl in range(4):
            d = 16 + (ks * 4 + tl) * 4
            k.e(f'buffer_store_dwordx4 v[{d}:{d + 3}], v5, s[12:15], s{24 + tl} offen')
            k.e(MF(48 + 4 * tl, d, 12, '0' if ks == 0 else None))
            if ks == 0:
                k.e(f's_add_u32 s{24 + tl}, s{24 + tl}, s28')
    k.e('v_lshlrev_b32 v6, 4, v4')
    k.e('v_add_u32 v6, s33, v6')
    k.e('v_and_b32 v7, 15, v1')
    k.e('v_cmp_eq_u32 vcc, 0, v7')
    k.e('s_and_saveexec_b64 s[36:37], vcc')
    for tl in range(4):
        k.e(f'ds_write_b128 v6, v[{48 + 4 * tl}:{51 + 4 * tl}] offset:{tl * 64}')
    k.e('s_mov_b64 exec, s[36:37]')
    k.barrier()
    k.e('s_cmp_eq_u32 s3, 0')
    with k.cond('w0', 's_cbranch_scc0'):
        k.e('v_lshlrev_b32 v6, 2, v1')
        k.e('v_add_u32 v7, 0x8000, v6')
        for w in range(9):
            if w < 4:
                k.e(f'ds_read_b32 v{16 + w}, v6 offset:{w * 8192}')
            else:
                k.e(f'ds_read_b32 v{16 + w}, v7 offset:{(w - 4) * 8192}')
        for w in range(1, 9):
            k.e(f'v_add_f32 v16, v16, v{16 + w}')
        k.e('v_lshlrev_b32 v7, 7, v4')
        k.e('v_and_b32 v8, 15, v1')
        k.e('v_lshl_add_u32 v7, v8, 2, v7')
        k.e('buffer_store_dword v16, v7, s[12:15], s29 offen')
    k.e('s_endpgm')


MIMIC_ATTN = True
LOG2E = 1.4426950408889634


def phi_pack(k, src, dst, t):
    for h in range(2):
        a, b = src + 2 * h, src + 2 * h + 1
        if MIMIC_ATTN:
            k.e(f'v_cvt_pk_bf16_f32 v{t}, v{a}, v{b}')
            k.e(f'v_lshlrev_b32 v{a}, 16, v{t}')
            k.e(f'v_and_b32 v{b}, 0xffff0000, v{t}')
        k.e(f'v_mul_f32 v{t}, {f32(LOG2E)}, v{a}')
        k.e(f'v_mul_f32 v{t + 1}, {f32(LOG2E)}, v{b}')
        k.e(f'v_exp_f32 v{t}, v{t}')
        k.e(f'v_exp_f32 v{t + 1}, v{t + 1}')
        k.e(f'v_add_f32 v{a}, 1.0, v{a}')
        k.e(f'v_add_f32 v{b}, 1.0, v{b}')
        k.e(f'v_med3_f32 v{a}, v{a}, v{t}, 1.0')
        k.e(f'v_med3_f32 v{b}, v{b}, v{t + 1}, 1.0')
        if MIMIC_ATTN:
            k.e(f'v_cvt_pk_bf16_f32 v{t}, v{a}, v{b}')
            k.e(f'v_lshlrev_b32 v{a}, 16, v{t}')
            k.e(f'v_and_b32 v{b}, 0xffff0000, v{t}')
        k.e(f'v_add_f32 v{a}, {f32(1e-6)}, v{a}')
        k.e(f'v_add_f32 v{b}, {f32(1e-6)}, v{b}')
        k.e(f'v_cvt_pk_bf16_f32 v{dst + h}, v{a}, v{b}')


def std_prologue(k, grid):
    k.e(f's_load_dwordx2 s[4:5], s[0:1], {ARG["ws"]}')
    k.e('v_lshrrev_b32 v1, 6, v0')
    k.e('v_readfirstlane_b32 s3, v1')
    k.e('v_and_b32 v1, 63, v0')
    k.e(f's_cmp_ge_u32 s2, {grid}')
    with k.cond('exit', 's_cbranch_scc0', terminal=True):
        k.e('s_endpgm')
    k.e('s_and_b32 s6, s2, 7')
    k.e('s_lshr_b32 s7, s2, 3')
    k.e('v_lshlrev_b32 v2, 4, v1')


K1_LDS = 131072 + 4 * 7168


def gen_k1():
    k = Kernel('k1')
    std_prologue(k, 256)
    k.e('s_and_b32 s20, s6, 3\ns_lshl_b32 s20, s20, 2\ns_and_b32 s21, s7, 3\ns_add_u32 s20, s20, s21')
    k.e('s_lshr_b32 s21, s6, 2\ns_lshl_b32 s21, s21, 3\ns_lshr_b32 s22, s7, 2\ns_add_u32 s21, s21, s22')
    k.e(f's_mul_i32 s22, s21, {126 * 1024}')
    k.e(f's_add_u32 s22, s22, {WS_WQKV}')
    srd(k, 8, 4, 's22', 126 * 1024)
    k.e('s_lshl_b32 s23, s20, 3\ns_lshl_b32 s24, s3, 1\ns_add_u32 s23, s23, s24')
    k.e(f's_mul_i32 s24, s23, {AFL_ROW}')
    k.e(f's_add_u32 s24, s24, {WS_XN}')
    srd(k, 12, 4, 's24', 2 * AFL_ROW)
    k.e(f'v_add_u32 v3, {AFL_ROW}, v2')
    k.e('s_lshl_b32 s25, s3, 12')
    stages = [(0, 4), (4, 9), (9, 13), (13, 18)]

    def XA(s, tt):
        return ('a', (s * 2 + tt) * 4)
    for st, (s0, s1) in enumerate(stages):
        for rnd in (2 * st, 2 * st + 1):
            k.e(f's_add_u32 s26, s25, {rnd * 16384}')
            k.e('s_mov_b32 m0, s26')
            for q in range(4):
                k.e(f'buffer_load_dwordx4 v2, s[8:11], s26 offen offset:{q * 1024} lds', tag=f'd{st}')
        for s in range(s0, s1):
            k.e(f's_mov_b32 s27, {(s // 4) * 4096}') if (s % 4 == 0 or s == s0) else None
            for tt in range(2):
                k.e(f'buffer_load_dwordx4 {vr(XA(s, tt)[1], 4, "a")}, v{2 + tt}, s[12:15], s27 offen offset:{(s % 4) * 1024}')
    ACC, WB = 16, 80

    def acc(op, tt):
        return ACC + (op * 2 + tt) * 4

    def wb(s, tile):
        return WB + ((s & 1) * 7 + tile) * 4
    k.e('v_add_u32 v4, 0x10000, v2')

    def rd(s):
        for tile in range(7):
            off = (s * 7 + tile) * 1024
            if off < 65536:
                k.e(f'ds_read_b128 {vr(wb(s, tile), 4)}, v2 offset:{off}')
            else:
                k.e(f'ds_read_b128 {vr(wb(s, tile), 4)}, v4 offset:{off - 65536}')
    for st, (s0, s1) in enumerate(stages):
        k.barrier(f'd{st}', lgkm=False)
        rd(s0)
        for s in range(s0, s1):
            if s + 1 < s1:
                rd(s + 1)
            c = '0' if s == 0 else None
            for op in (0, 1, 6, 2, 3, 4, 5, 7):
                tile = min(op, 6)
                for tt in range(2):
                    if op in (0, 1, 6):
                        k.e(MF(acc(op, tt), wb(s, tile), XA(s, tt), c))
                    else:
                        k.e(MF(acc(op, tt), XA(s, tt), wb(s, tile), c))
    T = 8
    PQ = 80
    k.e(f's_lshl_b32 s24, s23, 15\ns_lshl_b32 s25, s21, 11\ns_add_u32 s24, s24, s25')
    k.e(f's_add_u32 s24, s24, {WS_PQ}')
    srd(k, 12, 4, 's24', 32768 + 2048)
    k.e('s_mov_b32 s25, 32768')
    for tt in range(2):
        phi_pack(k, acc(6, tt), PQ + tt * 4 + 2, T)
        k.e(f'v_mov_b32 v{PQ + 8 + tt * 4 + 2}, v{PQ + tt * 4 + 2}')
        k.e(f'v_mov_b32 v{PQ + 8 + tt * 4 + 3}, v{PQ + tt * 4 + 3}')
        for hh in range(2):
            d = PQ + hh * 8 + tt * 4
            phi_pack(k, acc(hh, tt), d, T)
            k.e(f'buffer_store_dwordx4 {vr(d, 4)}, v2, s[12:15], {"s25" if tt else 0} offen offset:{hh * 1024}')
    PK, VV, LC = 96, 104, 112
    k.e('v_and_b32 v5, 12, v1')
    k.e('v_cmp_eq_u32 s[30:31], 8, v5')
    for tt in range(2):
        for hh in range(2):
            phi_pack(k, acc(2 + hh, tt), PK + hh * 4 + tt * 2, T)
            a = acc(4 + hh, tt)
            k.e(f'v_cvt_pk_bf16_f32 v{VV + hh * 4 + tt * 2}, v{a}, v{a + 1}')
            k.e(f'v_cvt_pk_bf16_f32 v{VV + hh * 4 + tt * 2 + 1}, v{a + 2}, v{a + 3}')
        a = acc(7, tt)
        k.e(f'v_cvt_pk_bf16_f32 v12, v{a}, v{a + 1}')
        k.e(f'v_cvt_pk_bf16_f32 v13, v{a + 2}, v{a + 3}')
        phi_pack(k, a, LC + tt * 2, T)
        k.e(f'v_cndmask_b32 v{LC + tt * 2}, v{LC + tt * 2}, v12, s[30:31]')
        k.e(f'v_cndmask_b32 v{LC + tt * 2 + 1}, v{LC + tt * 2 + 1}, v13, s[30:31]')
    DD = 16
    ops = [(PK, VV), (PK + 4, VV + 4), (PK, LC), (PK + 4, LC), (LC, VV), (LC, VV + 4), (LC, LC)]
    for t, (a, b) in enumerate(ops):
        k.e(MF(DD + 4 * t, a, b, '0'))
    k.e(f's_mul_i32 s25, s3, 7168')
    k.e(f's_add_u32 s25, s25, 131072')
    k.e('v_add_u32 v5, s25, v2')
    for t in range(7):
        k.e(f'ds_write_b128 v5, {vr(DD + 4 * t, 4)} offset:{t * 1024}')
    k.e(f's_mul_i32 s24, s21, 7168')
    k.e(f's_add_u32 s24, s24, {WS_KVZ}')
    srd(k, 12, 4, 's24', 7168)
    k.e('v_lshlrev_b32 v6, 2, v0')
    k.e(f'v_mov_b32 v7, {OOB}')
    k.e('v_bfe_u32 v8, v0, 2, 4')
    k.e('v_lshrrev_b32 v9, 1, v8')
    k.e('v_bfe_u32 v10, v0, 1, 1')
    k.e('v_cmp_eq_u32 s[30:31], 12, v8')
    k.e('s_cmp_eq_u32 s3, 1')
    k.e('s_cselect_b64 s[36:37], -1, 0')
    for hh in range(2):
        k.e(f'v_cmp_eq_u32 s[32:33], {4 + hh}, v9')
        k.e('s_or_b64 s[32:33], s[32:33], s[30:31]')
        k.e(f'v_cndmask_b32 v{44 + hh}, v7, v6, s[32:33]')
        k.e(f'v_cmp_eq_u32 s[34:35], {hh}, v10')
        k.e('s_and_b64 s[34:35], s[34:35], s[36:37]')
        k.e(f'v_cndmask_b32 v{46 + hh}, v7, v6, s[34:35]')
        k.e(f's_and_b64 s[{38 + 2 * hh}:{39 + 2 * hh}], s[32:33], s[34:35]')
    k.e('s_or_b64 s[38:39], s[38:39], s[40:41]')
    k.e('v_cndmask_b32 v48, v7, v6, s[38:39]')
    k.e('v_add_u32 v5, 131072, v6')
    k.e('s_mov_b32 s25, 4096')
    k.barrier()
    for t in range(7):
        for w in range(4):
            k.e(f'ds_read_b32 v{52 + t * 4 + w}, v5 offset:{w * 7168 + t * 1024}')
    for t in range(7):
        b = 52 + t * 4
        k.e(f'v_add_f32 v{b}, v{b}, v{b + 1}')
        k.e(f'v_add_f32 v{b + 2}, v{b + 2}, v{b + 3}')
        k.e(f'v_add_f32 v{b}, v{b}, v{b + 2}')
        vo = 6 if t < 2 else 44 + (t - 2)
        k.e(f'buffer_atomic_add_f32 v{b}, v{vo}, s[12:15], {"s25" if t >= 4 else 0} offen offset:{(t & 3) * 1024}')
    k.e('s_endpgm')
    return k


K2_LDS = 4 * 18 * 1024


def gen_k2():
    k = Kernel('k2')
    std_prologue(k, 256)
    k.e('s_lshl_b32 s20, s6, 3\ns_and_b32 s21, s7, 7\ns_add_u32 s20, s20, s21')
    k.e('s_lshr_b32 s21, s7, 3')
    srd(k, 8, 4, WS_KVZ, KVZ_SZ)
    k.e('s_lshl_b32 s22, s20, 16\ns_lshl_b32 s23, s3, 13\ns_add_u32 s22, s22, s23')
    k.e(f's_add_u32 s22, s22, {WS_PQ}')
    srd(k, 12, 4, 's22', 32768 + 8192)
    k.e('s_lshl_b32 s22, s21, 2\ns_add_u32 s22, s22, s3')
    k.e(f's_mul_i32 s22, s22, {45 * 1024}')
    k.e(f's_add_u32 s22, s22, {WS_WO}')
    srd(k, 16, 4, 's22', 45 * 1024)
    k.e('v_lshrrev_b32 v3, 4, v1')
    k.e('v_and_b32 v4, 15, v1')
    k.e(f'v_mov_b32 v5, {OOB}')
    k.e('v_cmp_gt_u32 s[30:31], 16, v1')
    k.e('v_add_u32 v6, 256, v2')
    k.e('v_cndmask_b32 v6, v5, v6, s[30:31]')
    k.e('v_and_b32 v7, 3, v4')
    k.e('v_cmp_eq_u32 s[32:33], 2, v7')
    k.e('v_lshrrev_b32 v8, 1, v4')
    k.e('v_and_b32 v9, 1, v4')
    A1, A1L = 10, 14
    for q4 in range(4):
        hh = q4 & 1
        k.e(f'v_cmp_eq_u32 s[34:35], {2 * q4}, v8')
        k.e(f'v_add_u32 v18, {8 + 2 * hh}, v9')
        k.e(f'v_cndmask_b32 v18, 12, v18, s[34:35]')
        k.e('s_or_b64 s[34:35], s[34:35], s[32:33]')
        k.e('v_lshl_add_u32 v19, v3, 4, v18')
        k.e('v_lshlrev_b32 v19, 4, v19')
        k.e(f'v_cndmask_b32 v{A1 + q4}, v5, v19, s[34:35]')
        k.e('v_add_u32 v19, 256, v19')
        k.e('s_and_b64 s[34:35], s[34:35], s[30:31]')
        k.e(f'v_cndmask_b32 v{A1L + q4}, v5, v19, s[34:35]')
    for m in range(4):
        k.e(f's_lshl_b32 s22, s3, 2\ns_add_u32 s22, s22, {m}')
        k.e(f's_mul_i32 s{40 + m}, s22, 7168')
        k.e(f's_add_u32 s{44 + m}, s{40 + m}, 4096')
    KV, PQ = 32, 128
    k.e('s_mov_b32 s24, 4096\ns_mov_b32 s25, 32768\ns_mov_b32 s26, 36864')
    for hl in range(8):
        m, hh, q4 = hl >> 1, hl & 1, hl & 3
        b = KV + hl * 12
        k.e(f'buffer_load_dwordx4 {vr(b, 4)}, v2, s[8:11], s{40 + m} offen offset:{hh * 1024}')
        k.e(f'buffer_load_dwordx4 {vr(b + 4, 4)}, v{A1 + q4}, s[8:11], s{40 + m} offen offset:{(2 + hh) * 1024}')
        k.e(f'buffer_load_dwordx2 {vr(b + 8, 2)}, v6, s[8:11], s{44 + m} offen offset:{hh * 1024 + 8 * hh}')
        k.e(f'buffer_load_dwordx2 {vr(b + 10, 2)}, v{A1L + q4}, s[8:11], s{44 + m} offen offset:{2048 + 8 * hh}')
        for tt in range(2):
            so = {(0, 0): '0', (0, 1): 's24', (1, 0): 's25', (1, 1): 's26'}[(tt, hl >> 2)]
            k.e(f'buffer_load_dwordx4 {vr(PQ + (hl * 2 + tt) * 4, 4)}, v2, s[12:15], {so} offen offset:{(hl & 3) * 1024}')
    for f in range(45):
        if f % 4 == 0:
            k.e(f's_mov_b32 s27, {f * 1024}')
        k.e(f'buffer_load_dwordx4 {vr(f * 4, 4, "a")}, v2, s[16:19], s27 offen offset:{(f % 4) * 1024}')
    k.e('v_lshrrev_b32 v20, 4, v0')
    k.e('v_cmp_le_u32 s[36:37], 6, v20')
    k.e('v_cndmask_b32 v21, 0, 1, s[36:37]')
    k.e('v_mul_u32_u24 v22, 6, v21')
    k.e('v_sub_u32 v22, v20, v22')
    k.e(f'v_mul_u32_u24 v23, {AFL_ROW}, v21')
    k.e('v_mul_u32_u24 v24, 768, v22')
    k.e('v_lshl_add_u32 v24, v4, 4, v24')
    k.e('v_add_u32 v23, v23, v24')
    k.e('v_cmp_gt_u32 vcc, 192, v0')
    k.e('v_cndmask_b32 v23, v5, v23, vcc')
    k.e(f's_mul_i32 s22, s20, {2 * AFL_ROW}')
    k.e(f's_mul_i32 s23, s21, {18 * 256}')
    k.e('s_add_u32 s28, s22, s23')
    srd(k, 48, 4, WS_XA, AFL_SZ)
    srd(k, 52, 4, WS_X1, AFL_SZ)
    srd(k, 56, 4, WS_ST, ST_SZ)
    XR = 240
    for u in range(3):
        k.e(f'buffer_load_dwordx4 {vr(XR + 4 * u, 4)}, v23, s[48:51], s28 offen offset:{u * 256}')
    OB = 192
    N = 24
    for tt in range(2):
        k.e(f'v_mov_b32 v{OB + (8 + tt) * 4 + 2}, 0')
        k.e(f'v_mov_b32 v{OB + (8 + tt) * 4 + 3}, 0')
    LS = 232
    for hl in range(8):
        hh = hl & 1
        b = KV + hl * 12
        for t in range(2):
            a = b + 4 * t
            k.e(f'v_cvt_pk_bf16_f32 v{a}, v{a}, v{a + 1}')
            k.e(f'v_cvt_pk_bf16_f32 v{a + 1}, v{a + 2}, v{a + 3}')
            k.e(f'v_cvt_pk_bf16_f32 v{a + 2 + hh}, v{b + 8 + 2 * t}, v{b + 9 + 2 * t}')
            k.e(f'v_mov_b32 v{a + 3 - hh}, 0')
    NR = [(24, 28)]
    for hl in range(8):
        b = KV + hl * 12
        for tt in range(2):
            pq = PQ + (hl * 2 + tt) * 4
            n0, n1 = (24, 28) if tt == 0 else (b + 8, 236)
            k.e(MF(n0, b, pq, '0'))
            k.e(MF(n1, b + 4, pq, '0'))
        for tt in range(2):
            n0, n1 = (24, 28) if tt == 0 else (b + 8, 236)
            d = n1 + 2
            if MIMIC_ATTN:
                bf16r(k, d, d)
                k.e(f'v_add_f32 v{d}, {f32(1e-6)}, v{d}')
                bf16r(k, d, d)
                for p in (n0, n0 + 2, n1):
                    k.e(f'v_cvt_pk_bf16_f32 v{n1 + 3}, v{p}, v{p + 1}')
                    k.e(f'v_lshlrev_b32 v{p}, 16, v{n1 + 3}')
                    k.e(f'v_and_b32 v{p + 1}, 0xffff0000, v{n1 + 3}')
            else:
                k.e(f'v_add_f32 v{d}, {f32(1e-6)}, v{d}')
            k.e(f'v_rcp_f32 v{d}, v{d}')
            for r in range(4):
                k.e(f'v_mul_f32 v{n0 + r}, v{n0 + r}, v{d}')
            ob = OB + ((hl >> 1) * 2 + tt) * 4 + 2 * (hl & 1)
            k.e(f'v_cvt_pk_bf16_f32 v{ob}, v{n0}, v{n0 + 1}')
            k.e(f'v_cvt_pk_bf16_f32 v{ob + 1}, v{n0 + 2}, v{n0 + 3}')
            for r in range(2):
                if hl & 3 == 0:
                    k.e(f'v_mul_f32 v{LS + tt * 2 + r}, v{n1 + r}, v{d}')
                else:
                    k.e(f'v_fmac_f32 v{LS + tt * 2 + r}, v{n1 + r}, v{d}')
            if hl & 3 == 3:
                k.e(f'v_cvt_pk_bf16_f32 v{OB + (8 + tt) * 4 + (hl >> 2)}, v{LS + tt * 2}, v{LS + tt * 2 + 1}')
    ACC = 32
    for ks in range(5):
        for t9 in range(9):
            for tt in range(2):
                k.e(MF(ACC + (tt * 9 + t9) * 4, ('a', (ks * 9 + t9) * 4), OB + (ks * 2 + tt) * 4, '0' if ks == 0 else None))
    k.e(f's_mul_i32 s22, s3, {18 * 1024}')
    k.e('v_add_u32 v6, s22, v2')
    for t in range(18):
        k.e(f'ds_write_b128 v6, {vr(ACC + t * 4, 4)} offset:{t * 1024}')
    RA = 10
    for u in range(3):
        k.e(f'v_mad_u32_u24 v7, v22, 3, {u}')
        k.e('v_lshrrev_b32 v8, 1, v7')
        k.e('v_mad_u32_u24 v8, v21, 9, v8')
        k.e('v_lshlrev_b32 v8, 10, v8')
        k.e('v_and_b32 v7, 1, v7')
        k.e('v_lshl_add_u32 v8, v7, 8, v8')
        k.e(f'v_lshl_add_u32 v{RA + u}, v4, 4, v8')
    k.barrier()
    k.e('s_cmp_lt_u32 s3, 3')
    with k.cond('w3', 's_cbranch_scc1', terminal=True):
        k.e('s_endpgm')
    R = 32
    for u in range(3):
        for w in range(4):
            for hf in range(2):
                d = R + ((u * 4 + w) * 2 + hf) * 4
                k.e(f'ds_read_b128 {vr(d, 4)}, v{RA + u} offset:{w * 18432 + hf * 512}')
    k.e('v_mov_b32 v14, 0\nv_mov_b32 v15, 0')
    for u in range(3):
        b = R + u * 32
        for j in range(8):
            k.e(f'v_add_f32 v{b + j}, v{b + j}, v{b + 8 + j}')
            k.e(f'v_add_f32 v{b + 16 + j}, v{b + 16 + j}, v{b + 24 + j}')
            k.e(f'v_add_f32 v{b + j}, v{b + j}, v{b + 16 + j}')
        for j in range(4):
            a, c = b + 2 * j, b + 2 * j + 1
            if MIMIC_ATTN:
                k.e(f'v_cvt_pk_bf16_f32 v16, v{a}, v{c}')
                k.e(f'v_lshlrev_b32 v{a}, 16, v16')
                k.e(f'v_and_b32 v{c}, 0xffff0000, v16')
            k.e(f'v_lshlrev_b32 v16, 16, v{XR + 4 * u + j}')
            k.e(f'v_and_b32 v17, 0xffff0000, v{XR + 4 * u + j}')
            k.e(f'v_add_f32 v{a}, v{a}, v16')
            k.e(f'v_add_f32 v{c}, v{c}, v17')
            k.e(f'v_cvt_pk_bf16_f32 v{b + 8 + j}, v{a}, v{c}')
            k.e(f'v_lshlrev_b32 v{a}, 16, v{b + 8 + j}')
            k.e(f'v_and_b32 v{c}, 0xffff0000, v{b + 8 + j}')
            k.e(f'v_add_f32 v14, v14, v{a}')
            k.e(f'v_fmac_f32 v15, v{a}, v{a}')
            k.e(f'v_add_f32 v14, v14, v{c}')
            k.e(f'v_fmac_f32 v15, v{c}, v{c}')
        k.e(f'buffer_store_dwordx4 {vr(b + 8, 4)}, v23, s[52:55], s28 offen offset:{u * 256}')
    k.e('v_lshl_add_u32 v16, v21, 4, v4')
    k.e('v_mul_u32_u24 v16, 192, v16')
    k.e('v_lshl_add_u32 v16, v22, 3, v16')
    k.e(f's_mul_i32 s22, s20, {32 * 192}')
    k.e('s_mul_i32 s23, s21, 48')
    k.e('s_add_u32 s22, s22, s23')
    k.e('buffer_store_dwordx2 v[14:15], v16, s[56:59], s22 offen')
    k.e('s_endpgm')
    return k


SLOT = 36 * 1024
K3_LDS = 4 * SLOT
GC = 0.7978845608028654


def gen_k3():
    k = Kernel('k3')
    std_prologue(k, 256)
    k.e('s_and_b32 s20, s6, 1\ns_lshl_b32 s20, s20, 2\ns_and_b32 s21, s7, 3\ns_add_u32 s20, s20, s21')
    k.e('s_lshr_b32 s21, s6, 1\ns_lshl_b32 s21, s21, 3\ns_lshr_b32 s22, s7, 2\ns_add_u32 s21, s21, s22')
    k.e(f's_mul_i32 s22, s21, {9 * SLOT}')
    k.e(f's_add_u32 s22, s22, {WS_WGU}')
    srd(k, 8, 4, 's22', 9 * SLOT)
    k.e('s_lshl_b32 s23, s20, 4\ns_lshl_b32 s24, s3, 2\ns_add_u32 s23, s23, s24')
    k.e(f's_mul_i32 s24, s23, {AFL_ROW}')
    k.e(f's_add_u32 s24, s24, {WS_X1}')
    srd(k, 12, 4, 's24', 4 * AFL_ROW)
    k.e(f's_mul_i32 s24, s23, {16 * 192}')
    k.e(f's_add_u32 s24, s24, {WS_ST}')
    srd(k, 16, 4, 's24', 64 * 192)
    k.e(f's_mul_i32 s24, s21, {9 * 128}')
    k.e(f's_add_u32 s24, s24, {WS_CS}')
    srd(k, 40, 4, 's24', 9 * 128)
    k.e(f's_mul_i32 s24, s23, {H_ROW}')
    k.e(f's_mul_i32 s25, s21, {9 * 512}')
    k.e('s_add_u32 s24, s24, s25')
    k.e(f's_add_u32 s24, s24, {WS_H}')
    srd(k, 44, 4, 's24', 3 * H_ROW + 9 * 512)
    k.e(f's_mul_i32 s26, s3, {9 * 1024}')
    SDMA_G, SDMA_L = 27, 28

    def dma_group(q, tag):
        out = []
        out.append(f's_add_u32 m0, s{SDMA_L}, {q * 4096}')
        out.append(f's_add_u32 s29, s{SDMA_G}, {q * 4096}')
        for j in range(4 if q < 2 else 1):
            out.append((f'buffer_load_dwordx4 v2, s[8:11], s29 offen offset:{j * 1024} lds', tag))
        return out

    def emit(x):
        if isinstance(x, tuple):
            k.e(x[0], tag=x[1])
        else:
            k.e(x)

    def dma_advance():
        return [f's_add_u32 s{SDMA_G}, s{SDMA_G}, {SLOT}',
                f's_add_u32 s{SDMA_L}, s{SDMA_L}, {SLOT}',
                f's_cmp_ge_u32 s{SDMA_L}, {4 * SLOT}',
                f's_cselect_b32 s29, {4 * SLOT}, 0',
                f's_sub_u32 s{SDMA_L}, s{SDMA_L}, s29']
    k.e(f's_mov_b32 s{SDMA_G}, s26\ns_mov_b32 s{SDMA_L}, s26')
    for q in range(3):
        for x in dma_group(q, 'P0'):
            emit(x)
    for x in dma_advance():
        emit(x)
    k.e('v_lshrrev_b32 v3, 4, v1\nv_and_b32 v4, 15, v1')
    k.e('v_mul_u32_u24 v5, 192, v4\nv_mul_u32_u24 v6, 48, v3\nv_add_u32 v5, v5, v6')
    STB = 100
    k.e('s_mov_b32 s30, 6144')
    for tt in range(4):
        for j in range(3):
            so = '0' if tt < 2 else 's30'
            off = (tt & 1) * 3072 + j * 16
            k.e(f'buffer_load_dwordx4 {vr(STB + (tt * 3 + j) * 4, 4)}, v5, s[16:19], {so} offen offset:{off}')
    for tt in range(1, 4):
        k.e(f'v_add_u32 v{6 + tt}, {tt * AFL_ROW}, v2')

    def XF(s, tt):
        n = s * 4 + tt
        return ('a', n * 4) if n < 64 else ('v', 224 + (n - 64) * 4)
    half = 9
    for s in range(18):
        if s % 4 == 0:
            k.e(f's_mov_b32 s31, {(s // 4) * 4096}')
        for tt in range(4):
            r = XF(s, tt)
            k.e(f'buffer_load_dwordx4 {vr(r[1], 4, r[0])}, v{2 if tt == 0 else 6 + tt}, s[12:15], s31 offen offset:{(s % 4) * 1024}')
        if s == half:
            for q in range(3):
                for x in dma_group(q, 'P1'):
                    emit(x)
            for x in dma_advance():
                emit(x)
    srd(k, 48, 4, WS_KVZ, KVZ_SZ)
    k.e('v_mov_b32 v12, 0\nv_mov_b32 v13, 0\nv_mov_b32 v14, 0\nv_mov_b32 v15, 0')
    k.e('s_mul_i32 s30, s2, 448')
    k.e('v_lshlrev_b32 v10, 4, v0')
    k.e(f'v_mov_b32 v11, {OOB}')
    k.e('v_cmp_gt_u32 vcc, 28, v0')
    k.e('v_cndmask_b32 v10, v11, v10, vcc')
    k.e('buffer_store_dwordx4 v[12:15], v10, s[48:51], s30 offen')
    NM, K0c, K1c, CC = 16, 20, 24, 28
    for tt in range(4):
        b = STB + tt * 12
        for j in range(1, 6):
            k.e(f'v_add_f32 v{b}, v{b}, v{b + 2 * j}')
            k.e(f'v_add_f32 v{b + 1}, v{b + 1}, v{b + 2 * j + 1}')
        allreduce_hi(k, b, b + 2)
        allreduce_hi(k, b + 1, b + 2)
        ln_stats(k, b, b + 1, NM + tt, b + 3, b + 2, var_out=CC + tt)
        rs = b + 3
        k.e(f'v_mul_f32 v{K0c + tt}, {f32(-2 * GC * LOG2E)}, v{rs}')
        k.e(f'v_mul_f32 v{b}, v{rs}, v{rs}')
        k.e(f'v_mul_f32 v{b}, v{b}, v{rs}')
        k.e(f'v_mul_f32 v{K1c + tt}, {f32(-2 * GC * 0.044715 * LOG2E)}, v{b}')
    ACC, EB, AB, CSR, TMP, HP = 32, 64, 96, 120, 128, 140
    VRD = 10
    k.e(f'v_mov_b32 v{VRD}, v2')
    k.e(f'v_add_u32 v{VRD + 1}, {SLOT}, v2')
    k.e(f's_mov_b32 s32, {SLOT}')
    k.e('v_lshlrev_b32 v12, 4, v3')
    k.e('v_lshrrev_b32 v13, 5, v1')
    k.e(f'v_mul_u32_u24 v13, {H_ROW}, v13')
    k.e('v_and_b32 v14, 31, v1')
    k.e('v_lshl_add_u32 v13, v14, 4, v13')
    k.e(f's_mov_b32 s33, 0')
    k.e(f's_mov_b32 s34, {OOB}')
    k.e(f's_mov_b32 s35, {OOB}')
    k.e(f's_mov_b32 s36, 0')

    def acc(gu, tt):
        return ACC + (gu * 4 + tt) * 4

    def eb(gu, tt):
        return EB + (gu * 4 + tt) * 4

    def ab(s, gu):
        return AB + ((s % 3) * 2 + gu) * 4

    def rd(s, gu):
        base = VRD if s < 18 else VRD + 1
        return f'ds_read_b128 {vr(ab(s, gu), 4)}, v{base} offset:{((s % 18) * 2 + gu) * 1024}'

    def copy_ops(gu, tt):
        return [f'v_fma_f32 v{eb(gu, tt) + r}, -v{NM + tt}, v{CSR + gu * 4 + r}, v{acc(gu, tt) + r}' for r in range(4)]

    def gelu_ops():
        ops = []
        for tp in range(2):
            for tq in range(2):
                tt = tp * 2 + tq
                for rp in range(2):
                    seq = []
                    for e in range(2):
                        r = rp * 2 + e
                        g, u, t = eb(0, tt) + r, eb(1, tt) + r, TMP + e
                        seq.append([
                            (f'v_mul_f32 v{t}, v{g}, v{g}', 1),
                            (f'v_fma_f32 v{t}, v{t}, v{K1c + tt}, v{K0c + tt}', 1),
                            (f'v_mul_f32 v{t}, v{t}, v{g}', 1),
                            (f'v_exp_f32 v{t}, v{t}', 2),
                            (f'v_mul_f32 v{u}, v{g}, v{u}', 1),
                            (f'v_fma_f32 v{t}, v{t}, v{CC + tt}, v{CC + tt}', 1),
                            (f'v_rcp_f32 v{t}, v{t}', 2),
                            (f'v_mul_f32 v{u}, v{u}, v{t}', 1)])
                    for a, b in zip(*seq):
                        ops += [a, b]
                    u = eb(1, tt) + rp * 2
                    ops.append((f'v_cvt_pk_bf16_f32 v{HP + tp * 4 + tq * 2 + rp}, v{u}, v{u + 1}', 1))
            h = HP + tp * 4
            ops.append((f'v_permlane32_swap_b32 v{h}, v{h + 2}', 1))
            ops.append((f'v_permlane32_swap_b32 v{h + 1}, v{h + 3}', 1))
            ops.append((f'buffer_store_dwordx4 {vr(h, 4)}, v13, s[44:47], s{34 + tp} offen', 0))
        return ops

    k.barrier('P0', lgkm=False)
    for s in range(2):
        for gu in range(2):
            k.e(rd(s, gu))
    with k.loop(9, 's37') as lp:
        order = []
        for s in range(0, 18, 2):
            if s == 0:
                order += [(0, 0), (1, 0), (0, 1), (1, 1)]
            elif s == 16:
                order += [(16, 0), (17, 0), (16, 1), (17, 1)]
            else:
                order += [(s, 0), (s, 1), (s + 1, 0), (s + 1, 1)]
        mf = [(s, gu, tt) for (s, gu) in order for tt in range(4)]
        post = [[] for _ in mf]
        cap = [2] * len(mf)
        pos_of = {(s, gu): 4 * i for i, (s, gu) in enumerate(order)}
        nxt = order[4:] + [(18, 0), (19, 0), (18, 1), (19, 1)]
        for i, (s, gu) in enumerate(nxt):
            m = 4 * i + 1
            old = (s - 3, gu)
            if old in pos_of:
                m = max(m, pos_of[old] + 3)
            post[min(m, len(mf) - 1)].append(rd(s, gu))
        cu = [c for tt in range(4) for c in copy_ops(1, tt)]
        m = 0
        for c in cu:
            while cap[m] == 0:
                m += 1
            post[m].append(c)
            cap[m] -= 1
        assert m <= 7
        cg_ = [(tt, c) for tt in range(4) for c in copy_ops(0, tt)]
        m = 135
        for tt, c in cg_:
            m = max(m, 132 + tt + 3)
            while cap[m] == 0:
                m += 1
            post[m].append(c)
            cap[m] -= 1
        g_ops = gelu_ops()
        tot = sum(c for _, c in g_ops)
        lo, hi = 8, 128
        accu = 0
        for txt, c in g_ops:
            m = lo + int(accu * (hi - lo) / tot)
            while c and cap[m] < c:
                m += 1
            post[m].append(txt)
            cap[m] -= c
            accu += c
            lo_m = m
            for mm in range(lo, m):
                cap[mm] = min(cap[mm], 0)
        post[9].append(f'buffer_load_dwordx4 {vr(CSR, 4)}, v12, s[40:43], s33 offen')
        post[10].append(f'buffer_load_dwordx4 {vr(CSR + 4, 4)}, v12, s[40:43], s33 offen offset:64')
        post[11].append('s_add_u32 s33, s33, 128')
        dtag = (lambda it: f'P{it[0] + 2}')
        dl = []
        for q in range(3):
            dl += dma_group(q, dtag)
        dl += dma_advance()
        m = 14
        for x in dl:
            post[m].append(x)
            m += 3
        BAR_AT = 124
        post[BAR_AT].append('BARRIER')
        post[130].append('s_mov_b32 s34, s36')
        post[131].append(f's_add_u32 s35, s36, {2 * H_ROW}')
        post[132].append('s_add_u32 s36, s36, 512')
        for m, (s, gu, tt) in enumerate(mf):
            k.e(MF(acc(gu, tt), ab(s, gu), XF(s, tt), '0' if s == 0 else None))
            for x in post[m]:
                if x == 'BARRIER':
                    k.barrier(lambda it: f'P{it[0] + 1}', lgkm=False)
                else:
                    emit(x)
        k.e(f'v_mov_b32 v{VRD}, v{VRD + 1}')
        k.e(f's_add_u32 s32, s32, {SLOT}')
        k.e(f's_cmp_ge_u32 s32, {4 * SLOT}')
        k.e('s_cselect_b32 s32, 0, s32')
        k.e(f'v_add_u32 v{VRD + 1}, s32, v2')
    for tt in range(4):
        for c in copy_ops(1, tt):
            k.e(c)
    for txt, c in gelu_ops():
        k.e(txt)
    k.e('s_endpgm')
    return k


K4_LDS = 4 * SLOT


def gen_k4():
    k = Kernel('k4')
    std_prologue(k, 256)
    k.e('s_and_b32 s20, s6, 3')
    k.e('s_lshr_b32 s21, s6, 2\ns_lshl_b32 s21, s21, 3\ns_and_b32 s22, s7, 7\ns_add_u32 s21, s21, s22')
    k.e('s_lshr_b32 s22, s7, 3')
    k.e('s_and_b32 s23, s3, 1')
    k.e('s_lshr_b32 s24, s3, 1')
    k.e('s_lshl_b32 s25, s22, 2\ns_add_u32 s25, s25, s20')
    k.e(f's_mul_i32 s25, s25, {9 * SLOT}')
    k.e(f's_add_u32 s25, s25, {WS_WD}')
    srd(k, 8, 4, 's25', 9 * SLOT)
    k.e('s_lshl_b32 s25, s21, 3\ns_lshl_b32 s26, s23, 2\ns_add_u32 s38, s25, s26')
    k.e(f's_mul_i32 s25, s38, {H_ROW}')
    k.e(f's_mul_i32 s26, s20, {36 * 1024}')
    k.e('s_add_u32 s25, s25, s26')
    k.e('s_lshl_b32 s26, s24, 11')
    k.e('s_add_u32 s25, s25, s26')
    k.e(f's_add_u32 s25, s25, {WS_H}')
    srd(k, 12, 4, 's25', 3 * H_ROW + 36 * 1024)
    for tt in range(4):
        k.e(f's_lshl_b32 s25, s24, 1\ns_add_u32 s25, s25, {tt}\ns_and_b32 s25, s25, 3')
        k.e(f's_mul_i32 s25, s25, {H_ROW}')
        k.e(f'v_add_u32 v{4 + tt}, s25, v2')
    k.e(f's_mul_i32 s26, s3, {9 * 1024}')
    SDMA_G, SDMA_L = 27, 28

    def dma_group(q, tag):
        out = [f's_add_u32 m0, s{SDMA_L}, {q * 4096}', f's_add_u32 s29, s{SDMA_G}, {q * 4096}']
        for j in range(4 if q < 2 else 1):
            out.append((f'buffer_load_dwordx4 v2, s[8:11], s29 offen offset:{j * 1024} lds', tag))
        return out

    def emit(x):
        if isinstance(x, tuple):
            k.e(x[0], tag=x[1])
        else:
            k.e(x)

    def dma_advance():
        return [f's_add_u32 s{SDMA_G}, s{SDMA_G}, {SLOT}',
                f's_add_u32 s{SDMA_L}, s{SDMA_L}, {SLOT}',
                f's_cmp_ge_u32 s{SDMA_L}, {4 * SLOT}',
                f's_cselect_b32 s29, {4 * SLOT}, 0',
                f's_sub_u32 s{SDMA_L}, s{SDMA_L}, s29']

    def hb(buf, a, tt):
        return ('a', ((buf * 2 + a) * 4 + tt) * 4)

    def hload(buf, a, tt):
        return f'buffer_load_dwordx4 {vr(hb(buf, a, tt)[1], 4, "a")}, v{4 + tt}, s[12:15], s30 offen offset:{a * 1024}'
    k.e(f's_mov_b32 s{SDMA_G}, s26\ns_mov_b32 s{SDMA_L}, s26')
    k.e('s_mov_b32 s30, 0')
    for st in range(3):
        if st < 2:
            for q in range(3):
                for x in dma_group(q, f'P{st}'):
                    emit(x)
            for x in dma_advance():
                emit(x)
        for a in range(2):
            for tt in range(4):
                k.e(hload(st, a, tt))
        k.e('s_add_u32 s30, s30, 4096')
    ACC, AB = 16, 160
    for r in range(144):
        k.e(f'v_mov_b32 v{ACC + r}, 0')
    VRD = 10
    k.e(f's_mul_i32 s25, s24, {18 * 1024}')
    k.e(f'v_add_u32 v12, s25, v2')
    k.e(f'v_mov_b32 v{VRD}, v12')
    k.e(f'v_add_u32 v{VRD + 1}, {SLOT}, v12')
    k.e(f's_mov_b32 s32, {SLOT}')
    NAB, LEAD = 6, 4

    def acc(t9, tt):
        return ACC + (tt * 9 + t9) * 4

    def ab(f):
        return AB + (f % NAB) * 4

    def rd(f):
        base = VRD if f < 18 else VRD + 1
        return f'ds_read_b128 {vr(ab(f), 4)}, v{base} offset:{(f % 18) * 1024}'
    k.barrier('P0', lgkm=False)
    for f in range(LEAD):
        k.e(rd(f))
    with k.loop(3, 's37'):
        for u in range(3):
            stage = (lambda it, u=u: it[0] * 3 + u)
            mf = [(f, tt) for f in range(18) for tt in range(4)]
            post = [[] for _ in mf]
            for f in range(LEAD, 18 + LEAD):
                post[(f - LEAD) * 4 + 1].append(rd(f))
            dl = []
            for q in range(3):
                dl += dma_group(q, (lambda it, u=u: f'P{it[0] * 3 + u + 2}'))
            dl += dma_advance()
            m = 2
            for x in dl:
                post[m].append(x)
                m += 2 if m % 4 != 3 else 3
                if m % 4 == 1:
                    m += 1
            for tt in range(4):
                post[36 + 2 * tt].append(hload(u, 0, tt))
            post[50].append('BARRIER')
            for m, (f, tt) in enumerate(mf):
                k.e(MF(acc(f % 9, tt), ab(f), hb(u, f // 9, tt)))
                for x in post[m]:
                    if x == 'BARRIER':
                        k.barrier((lambda it, u=u: f'P{it[0] * 3 + u + 1}'), lgkm=False)
                    else:
                        emit(x)
            for tt in range(4):
                k.e(hload(u, 1, tt))
            k.e('s_add_u32 s30, s30, 4096')
            k.e(f's_cmp_ge_u32 s30, {9 * 4096}')
            k.e(f's_cselect_b32 s30, {OOB}, s30')
            k.e(f'v_mov_b32 v{VRD}, v{VRD + 1}')
            k.e(f's_add_u32 s32, s32, {SLOT}')
            k.e(f's_cmp_ge_u32 s32, {4 * SLOT}')
            k.e('s_cselect_b32 s32, 0, s32')
            k.e(f'v_add_u32 v{VRD + 1}, s32, v12')
    k.barrier(vm_all=True)
    k.e(f's_mul_i32 s25, s3, {18 * 1024}')
    k.e('v_add_u32 v8, s25, v2')
    for tt in (2, 3):
        for t9 in range(9):
            k.e(f'ds_write_b128 v8, {vr(acc(t9, tt), 4)} offset:{((tt - 2) * 9 + t9) * 1024}')
    k.e('s_xor_b32 s25, s3, 2')
    k.e(f's_mul_i32 s25, s25, {18 * 1024}')
    k.e('v_add_u32 v9, s25, v2')
    k.e('s_lshl_b32 s25, s24, 1\ns_add_u32 s25, s25, s38')
    k.e(f's_mul_i32 s25, s25, {AFL_ROW}')
    k.e(f's_mul_i32 s26, s20, {AFL_SZ}')
    k.e('s_add_u32 s25, s25, s26')
    k.e(f's_mul_i32 s26, s22, {9 * 512}')
    k.e('s_add_u32 s25, s25, s26')
    k.e(f's_add_u32 s25, s25, {WS_P}')
    srd(k, 16, 4, 's25', AFL_ROW + 9 * 512)
    k.e('v_lshrrev_b32 v13, 5, v1')
    k.e(f'v_mul_u32_u24 v13, {AFL_ROW}, v13')
    k.e('v_and_b32 v14, 31, v1')
    k.e('v_lshl_add_u32 v13, v14, 4, v13')
    k.e('s_mov_b32 s26, 4096')
    k.barrier()
    for t9 in range(9):
        for tt in range(2):
            k.e(f'ds_read_b128 {vr(acc(t9, tt + 2), 4)}, v9 offset:{(tt * 9 + t9) * 1024}')
    for t9 in range(9):
        h = 160 + t9 * 4
        for tt in range(2):
            a, b = acc(t9, tt), acc(t9, tt + 2)
            for r in range(4):
                k.e(f'v_add_f32 v{a + r}, v{a + r}, v{b + r}')
            k.e(f'v_cvt_pk_bf16_f32 v{h + tt * 2}, v{a}, v{a + 1}')
            k.e(f'v_cvt_pk_bf16_f32 v{h + tt * 2 + 1}, v{a + 2}, v{a + 3}')
        k.e(f'v_permlane32_swap_b32 v{h}, v{h + 2}')
        k.e(f'v_permlane32_swap_b32 v{h + 1}, v{h + 3}')
        k.e(f'buffer_store_dwordx4 {vr(h, 4)}, v13, s[16:19], {"s26" if t9 == 8 else 0} offen offset:{(t9 % 8) * 512}')
    k.e('s_endpgm')
    return k


def gen_k5(final):
    k = Kernel('k6' if final else 'k5')
    k.e(f's_load_dwordx2 s[4:5], s[0:1], {ARG["ws"]}')
    k.e(f's_load_dwordx2 s[6:7], s[0:1], {ARG["out"]}')
    k.e('s_cmp_ge_u32 s2, 256')
    with k.cond('exit', 's_cbranch_scc0', terminal=True):
        k.e('s_endpgm')
    ln_body(k, 'final' if final else 'mid')
    return k


HEADER = open('interleave_layers__linear_attn_block__geglu_ffn__prompt.s.ref').read().split('\n')


def build(path, launches=None):
    ks = {
        'k0': (gen_k0(), K0_GRID, 576, K0_LDS),
        'k1': (gen_k1(), 256, 256, K1_LDS),
        'k2': (gen_k2(), 256, 256, K2_LDS),
        'k3': (gen_k3(), 256, 256, K3_LDS),
        'k4': (gen_k4(), 256, 256, K4_LDS),
        'k5': (gen_k5(False), 256, 576, 1024),
        'k6': (gen_k5(True), 256, 576, 1024),
    }
    if launches is None:
        launches = ['k0', 'k1', 'k2', 'k3', 'k4', 'k5', 'k1', 'k2', 'k3', 'k4', 'k6']
    out = []
    for line in HEADER:
        if line.startswith(';') and '@launch' not in line:
            out.append(line)
        elif not line.startswith(';'):
            break
    for n in launches:
        kk, g, b, l = ks[n]
        out.append(f'; @launch kernel={n}_kernel grid=({g},1,1) block=({b},1,1) lds={l}')
    out.append('.amdgcn_target "amdgcn-amd-amdhsa--gfx950"')
    out.append('.text')
    desc = []
    for n, (kk, g, b, l) in ks.items():
        body = kk.render()
        mv, ma, ms = kk.max_regs()
        acc_off = max(4, (mv + 1 + 3) // 4 * 4)
        nfv = acc_off + ma + 1 if ma >= 0 else mv + 1
        out.append(f'.globl {n}_kernel\n.p2align 8\n.type {n}_kernel,@function\n{n}_kernel:')
        out.append(body)
        desc.append(f'''.p2align 6
.amdhsa_kernel {n}_kernel
  .amdhsa_next_free_vgpr {nfv}
  .amdhsa_next_free_sgpr {max(ms + 1, 16)}
  .amdhsa_accum_offset {acc_off}
  .amdhsa_group_segment_fixed_size 0
  .amdhsa_kernarg_size 80
  .amdhsa_user_sgpr_count 2
  .amdhsa_user_sgpr_kernarg_segment_ptr 1
  .amdhsa_system_sgpr_workgroup_id_x 1
.end_amdhsa_kernel''')
        print(f'{n}: v{mv + 1} a{ma + 1} s{ms + 1} lines {body.count(chr(10))}', file=sys.stderr)
    out.append('.section .rodata,"a"')
    out += desc
    open(path, 'w').write('\n'.join(out) + '\n')


if __name__ == '__main__':
    build(sys.argv[1] if len(sys.argv) > 1 else 'interleave_layers__linear_attn_block__geglu_ffn__prompt.s')
```
